```python
import torch

def _softmax(x, axis=-1):
    return torch.softmax(x, dim=axis)
def _gelu(x):
    return torch.nn.functional.gelu(x, approximate="tanh")
def _silu(x):
    return torch.nn.functional.silu(x)
def _sigmoid(x):
    return torch.sigmoid(x)
def _layernorm(x, axis=-1, eps=1e-5):
    m = x.mean(dim=axis, keepdim=True)
    v = x.var(dim=axis, keepdim=True, unbiased=False)
    return (x - m) / torch.sqrt(v + eps)
def _scatter_add(tgt, idx, src, axis=0):
    return tgt.clone().index_add_(axis, idx, src)
def _segment_sum(src, seg, n):
    out = torch.zeros((n,) + src.shape[1:], dtype=src.dtype)
    return out.index_add_(0, seg, src)
def _pad(x, pw):
    flat = tuple(v for pair in reversed(pw) for v in pair)
    return torch.nn.functional.pad(x, flat)

kernel_name = 'sequential_preLN__mha_block_cached__geglu_ffn__decode'

def setup_inputs():

    _w = (lambda a: (lambda t: t.to(torch.bfloat16) if t.is_floating_point() else t)(torch.as_tensor(a)))
    def _A_setup():
        B, Sq, D = 2, 1, 448
        H, Sk, Dh = 16, 16384, 256
        return {
            "x": _w((lambda *s: torch.randn(*s, dtype=torch.bfloat16) * 0.05)(B, Sq, D)),
            "k_cache": _w((lambda *s: torch.randn(*s, dtype=torch.bfloat16) * 3.2)(B, H, Sk, Dh)),
            "v_cache": _w((lambda *s: torch.randn(*s, dtype=torch.bfloat16) * 0.4)(B, H, Sk, Dh)),
            "wq": _w((lambda *s: torch.randn(*s, dtype=torch.bfloat16) * 3.2)(D, H * Dh) * (D ** -0.5)),
            "wo": _w((lambda *s: torch.randn(*s, dtype=torch.bfloat16) * 0.4)(H * Dh, D) * ((H * Dh) ** -0.5)),
        }
    _A_in = _A_setup()

    def _B_setup():
        B, S, D, F = 2, 1, 448, 1792
        return {
            "x": _w((lambda *s: torch.randn(*s, dtype=torch.bfloat16) * 0.05)(B, S, D)),
            "w_gate": _w((lambda *s: torch.randn(*s, dtype=torch.bfloat16) * 0.05)(D, F)),
            "w_up": _w((lambda *s: torch.randn(*s, dtype=torch.bfloat16) * 0.05)(D, F)),
            "w_down": _w((lambda *s: torch.randn(*s, dtype=torch.bfloat16) * 0.05)(F, D)),
        }
    _B_in = _B_setup()

    return {
        "A_x": _A_in["x"],
        "A_k_cache": _A_in["k_cache"],
        "A_v_cache": _A_in["v_cache"],
        "A_wq": _A_in["wq"],
        "A_wo": _A_in["wo"],
        "B_x": _B_in["x"],
        "B_w_gate": _B_in["w_gate"],
        "B_w_up": _B_in["w_up"],
        "B_w_down": _B_in["w_down"],
    }

def reference(A_x, A_k_cache, A_v_cache, A_wq, A_wo, B_x, B_w_gate, B_w_up, B_w_down):
    def _A_ref(x, k_cache, v_cache, wq, wo):
        B, Sq, D = x.shape
        H, Dh = 16, 256
        q = (lambda x, *d: x.permute(*d))((x @ wq).reshape(B, Sq, H, Dh), 0, 2, 1, 3)
        scores = torch.einsum("bhqd,bhkd->bhqk", q, k_cache) * (Dh ** -0.5)
        p = _softmax(scores, axis=-1)
        o = torch.einsum("bhqk,bhkd->bhqd", p, v_cache)
        return (lambda x, *d: x.permute(*d))(o, 0, 2, 1, 3).reshape(B, Sq, H * Dh) @ wo

    def _B_ref(x, w_gate, w_up, w_down):
        return (_gelu(x @ w_gate) * (x @ w_up)) @ w_down

    x = A_x
    h = x + _A_ref(_layernorm(x, axis=-1), A_k_cache, A_v_cache, A_wq, A_wo)
    h2 = h + _B_ref(_layernorm(h, axis=-1), B_w_gate, B_w_up, B_w_down)
    return h2
```

```python
import sys
KN = 'sequential_preLN__mha_block_cached__geglu_ffn__decode'
def gen(waves=8, D=2, static=0.8, pol='nt', cstride=256, amap='B', phase='kv', cK=0, cV=0, NG=2):
    nwg = 256
    G = 2 * NG
    HB = NG * 2048
    assert D <= G
    items = (4 << 20) // HB
    gw = 4 * waves
    wb = waves.bit_length() - 1
    rounds = items // gw
    rb = rounds.bit_length() - 1
    srounds = max(int(round(rounds * static)), 2)
    hb = HB.bit_length() - 1
    o = []
    A = o.append
    A('; @launch grid=(%d,1,1) block=(%d,1,1) lds=0' % (nwg, waves * 64))
    A('.amdgcn_target "amdgcn-amd-amdhsa--gfx950"')
    A('.text\n.globl %s_kernel\n.p2align 8\n.type %s_kernel,@function\n%s_kernel:' % (KN, KN, KN))
    A('s_cmp_ge_u32 s2, %d\ns_cbranch_scc1 L_end' % (nwg))
    A('s_memrealtime s[24:25]')
    A('s_load_dwordx4 s[4:7], s[0:1], 8')
    A('s_load_dwordx4 s[20:23], s[0:1], 80')
    A('s_getreg_b32 s40, hwreg(HW_REG_XCC_ID)')
    A('s_and_b32 s40, s40, 7')
    A('v_lshrrev_b32 v1, 6, v0\nv_and_b32 v2, 63, v0\ns_nop 0\nv_readfirstlane_b32 s3, v1')
    A('s_waitcnt lgkmcnt(0)')
    A('s_mov_b32 s30, s2')
    A('s_lshr_b32 s31, s2, 3\ns_and_b32 s33, s40, 3\ns_lshr_b32 s38, s40, 2')
    A('s_lshl_b32 s16, s31, 23')
    A('s_add_u32 s8, s4, s16\ns_addc_u32 s9, s5, 0\ns_and_b32 s9, s9, 0xffff\ns_mov_b32 s10, 0x800000\ns_mov_b32 s11, 0x20000')
    A('s_add_u32 s12, s6, s16\ns_addc_u32 s13, s7, 0\ns_and_b32 s13, s13, 0xffff\ns_mov_b32 s14, 0x800000\ns_mov_b32 s15, 0x20000')
    A('s_mul_i32 s34, s33, %d\ns_add_u32 s34, s34, s3' % waves)
    A('v_lshrrev_b32 v3, 4, v2\nv_lshlrev_b32 v3, 9, v3\nv_and_b32 v4, 15, v2\nv_lshlrev_b32 v4, 4, v4\nv_add_u32 v8, v3, v4')
    A('v_add_u32 v9, 4096, v8')
    A('v_mov_b32 v5, 0')
    A('s_lshl_b32 s17, s31, 1\ns_add_u32 s17, s17, s38\ns_mul_i32 s17, s17, %d\nv_mov_b32 v10, s17\nv_mov_b32 v11, 1' % cstride)
    A('s_xor_b32 s26, s38, %d\ns_xor_b32 s27, s38, %d' % (cK, cV))
    D0 = 16
    CUR, NXT = 48, 64
    def mapoff(idreg, dst, unit_bits, nrb, basereg, preg):
        A('s_lshr_b32 s44, %s, %d' % (idreg, wb + 2))
        A('s_and_b32 s44, s44, %d' % ((1 << nrb) - 1))
        A('s_lshr_b32 s45, %s, %d\ns_and_b32 s45, s45, 3' % (idreg, wb))
        A('s_and_b32 s46, %s, %d' % (idreg, waves - 1))
        if amap == 'A':
            A('s_lshl_b32 s44, s44, %d\ns_lshl_b32 s45, s45, %d\ns_lshl_b32 s46, s46, %d' % (unit_bits + wb + 2, unit_bits + wb, unit_bits))
        elif amap == 'B':
            A('s_lshl_b32 s45, s45, %d\ns_lshl_b32 s44, s44, %d\ns_lshl_b32 s46, s46, %d' % (20, unit_bits + wb, unit_bits))
        A('s_or_b32 s44, s44, s45\ns_or_b32 s44, s44, s46')
        A('s_and_b32 s45, s44, 0x1fff\ns_lshr_b32 s44, s44, 13\ns_lshl_b32 s44, s44, 14\ns_or_b32 s44, s44, s45')
        A('s_add_u32 s45, s44, %s\ns_lshr_b32 s45, s45, 21\ns_xor_b32 s45, s45, %s\ns_and_b32 s45, s45, 1\ns_lshl_b32 s45, s45, 13' % (basereg, preg))
        A('s_or_b32 %s, s44, s45' % dst)
    def mkdesc(R):
        i = 's%d' % (R + 10)
        if phase == 'kv':
            for k in range(4): A('s_mov_b32 s%d, s%d' % (R + k, 8 + k))
            for k in range(4): A('s_mov_b32 s%d, s%d' % (R + 4 + k, 12 + k))
            mapoff(i, 's%d' % (R + 8), hb, rb, 's8', 's26')
            mapoff(i, 's%d' % (R + 9), hb, rb, 's12', 's27')
        else:
            A('s_cmp_lt_u32 %s, %d' % (i, items // 2))
            for k in range(2):
                A('s_cselect_b32 s%d, s%d, s%d' % (R + k, 8 + k, 12 + k))
                A('s_cselect_b32 s%d, s%d, s%d' % (R + 4 + k, 8 + k, 12 + k))
            A('s_cselect_b32 s39, s26, s27')
            for k in (2, 3):
                A('s_mov_b32 s%d, s%d\ns_mov_b32 s%d, s%d' % (R + k, 8 + k, R + 4 + k, 8 + k))
            mapoff(i, 's%d' % (R + 8), hb + 1, rb - 1, 's%d' % R, 's39')
            A('s_add_u32 s%d, s%d, %d' % (R + 9, R + 8, HB))
        A('s_cmp_ge_u32 %s, %d\ns_cselect_b32 s%d, 0, s%d\ns_cselect_b32 s%d, 0, s%d' % (i, items, R + 2, R + 2, R + 6, R + 6))
    def load(gidx, R):
        t = gidx // NG; g = gidx % NG
        for h in range(2):
            f = g * 2048 + h * 256
            r = D0 + gidx * 8 + h * 4
            A('buffer_load_dwordx4 v[%d:%d], v%d, s[%d:%d], s%d offen offset:%d %s' % (r, r + 3, 8 + f // 4096, R + 4 * t, R + 4 * t + 3, R + 8 + t, f % 4096, pol))
    A('s_mov_b32 s%d, s34' % (CUR + 10)); mkdesc(CUR)
    A('s_add_u32 s%d, s34, %d' % (NXT + 10, gw)); mkdesc(NXT)
    A('s_mov_b32 s35, 2')
    A('s_mov_b32 s36, 0')
    for g in range(D):
        load(g, CUR)
    A('L_loop:')
    A('s_cmp_lt_u32 s35, %d\ns_cbranch_scc1 L_body_static' % srounds)
    for dyn in (1, 0):
        if not dyn: A('L_body_static:')
        if dyn:
            A('s_mov_b64 exec, 1')
            A('global_atomic_add v12, v10, v11, s[20:21] sc0 sc1')
            A('s_mov_b64 exec, -1')
        for g in range(G):
            extra = 1 if (dyn and g < D) else 0
            A('s_waitcnt vmcnt(%d)' % (2 * (D - 1) + extra))
            A('v_xor_b32 v5, v5, v%d' % (D0 + g * 8))
            A('v_xor_b32 v5, v5, v%d' % (D0 + g * 8 + 4))
            j = g + D
            if j < G: load(j, CUR)
            else: load(j - G, NXT)
        A('s_add_u32 s36, s36, 1')
        for k in (0,1,2,4,5,6,8,9,10): A('s_mov_b32 s%d, s%d' % (CUR + k, NXT + k))
        if dyn:
            if D == G: A('s_waitcnt vmcnt(%d)' % (2 * D))
            A('v_readfirstlane_b32 s%d, v12' % (NXT + 10))
            A('s_add_u32 s%d, s%d, %d' % (NXT + 10, NXT + 10, srounds * gw))
        else:
            A('s_add_u32 s%d, s%d, %d' % (NXT + 10, NXT + 10, gw))
            A('s_add_u32 s35, s35, 1')
        mkdesc(NXT)
        A('s_cmp_lt_u32 s%d, %d\ns_cbranch_scc1 L_loop' % (CUR + 10, items))
        if dyn: A('s_branch L_done')
    A('L_done:')
    A('s_waitcnt vmcnt(0)')
    A('s_memrealtime s[28:29]')
    A('s_getreg_b32 s41, hwreg(HW_REG_HW_ID)')
    A('s_waitcnt lgkmcnt(0)')
    A('s_lshl_b32 s36, s36, 8\ns_and_b32 s40, s40, 15\ns_or_b32 s40, s40, s36')
    A('v_mov_b32 v12, s24\nv_mov_b32 v13, s28\nv_mov_b32 v14, s40\nv_mov_b32 v15, s41')
    A('s_mul_i32 s20, s30, %d\ns_add_u32 s20, s20, s3\ns_lshl_b32 s20, s20, 4' % waves)
    A('v_mov_b32 v6, s20')
    A('v_cmp_eq_u32 vcc, 0, v2\ns_and_saveexec_b64 s[42:43], vcc')
    A('global_store_dwordx4 v6, v[12:15], s[22:23]')
    A('L_end:\ns_endpgm')
    nv = D0 + 8 * G
    A('.section .rodata,"a"\n.p2align 6\n.amdhsa_kernel %s_kernel' % KN)
    A('  .amdhsa_next_free_vgpr %d\n  .amdhsa_next_free_sgpr 80\n  .amdhsa_accum_offset %d' % (nv, min(256, (nv + 3) // 4 * 4)))
    A('  .amdhsa_group_segment_fixed_size 0\n  .amdhsa_kernarg_size 96\n  .amdhsa_user_sgpr_count 2\n  .amdhsa_user_sgpr_kernarg_segment_ptr 1\n  .amdhsa_system_sgpr_workgroup_id_x 1\n.end_amdhsa_kernel')
    return '\n'.join(o) + '\n'
if __name__ == '__main__':
    names = []
    cfgs = eval(sys.argv[1])
    for c in cfgs:
        n = 'dn_' + '_'.join('%s%s' % (k, str(v).replace(' ','')) for k, v in c.items()) + '.s'
        open(n, 'w').write(gen(**c))
        names.append(n)
    print(' '.join(names))
```

```python
import sys
KN = 'sequential_preLN__mha_block_cached__geglu_ffn__decode'
def gen(waves=8, D=2, static=0.8, pol='nt', cstride=256, amap='A', phase='kv', rot=0, vsh=0, gmap=0, NG=2, mrot=0):
    nwg = 256
    G = 2 * NG
    HB = NG * 2048
    assert D <= G
    items = (8 << 20) // HB
    gw = 8 * waves
    wb = waves.bit_length() - 1
    rounds = items // gw
    rb = rounds.bit_length() - 1
    srounds = max(int(round(rounds * static)), 2)
    hb = HB.bit_length() - 1
    o = []
    A = o.append
    A('; @launch grid=(%d,1,1) block=(%d,1,1) lds=0' % (nwg, waves * 64))
    A('.amdgcn_target "amdgcn-amd-amdhsa--gfx950"')
    A('.text\n.globl %s_kernel\n.p2align 8\n.type %s_kernel,@function\n%s_kernel:' % (KN, KN, KN))
    A('s_cmp_ge_u32 s2, %d\ns_cbranch_scc1 L_end' % (nwg))
    A('s_memrealtime s[24:25]')
    A('s_load_dwordx4 s[4:7], s[0:1], 8')
    A('s_load_dwordx4 s[20:23], s[0:1], 80')
    A('s_getreg_b32 s40, hwreg(HW_REG_XCC_ID)')
    A('v_lshrrev_b32 v1, 6, v0\nv_and_b32 v2, 63, v0\ns_nop 0\nv_readfirstlane_b32 s3, v1')
    A('s_waitcnt lgkmcnt(0)')
    A('s_mov_b32 s30, s2')
    if gmap == 0:
        A('s_lshr_b32 s31, s2, 3\ns_and_b32 s33, s2, 7')
    else:
        A('s_and_b32 s31, s2, 31\ns_lshr_b32 s33, s2, 5')
    A('s_lshl_b32 s16, s31, 23')
    A('s_add_u32 s8, s4, s16\ns_addc_u32 s9, s5, 0\ns_and_b32 s9, s9, 0xffff\ns_mov_b32 s10, 0x800000\ns_mov_b32 s11, 0x20000')
    A('s_add_u32 s12, s6, s16\ns_addc_u32 s13, s7, 0\ns_and_b32 s13, s13, 0xffff\ns_mov_b32 s14, 0x800000\ns_mov_b32 s15, 0x20000')
    A('s_mul_i32 s34, s33, %d\ns_add_u32 s34, s34, s3' % waves)
    A('v_lshrrev_b32 v3, 4, v2\nv_lshlrev_b32 v3, 9, v3\nv_and_b32 v4, 15, v2\nv_lshlrev_b32 v4, 4, v4\nv_add_u32 v8, v3, v4')
    A('v_add_u32 v9, 4096, v8')
    A('v_mov_b32 v5, 0')
    A('s_mul_i32 s17, s31, %d\nv_mov_b32 v10, s17\nv_mov_b32 v11, 1' % cstride)
    A('s_mul_i32 s37, s31, %d' % rot)
    D0 = 16
    CUR, NXT = 48, 64
    def mapoff(idreg, dst, unit_bits, nrb, extra_rot):
        A('s_lshr_b32 s44, %s, %d' % (idreg, wb + 3))
        A('s_add_u32 s44, s44, s37')
        if extra_rot: A('s_add_u32 s44, s44, %d' % extra_rot)
        A('s_lshr_b32 s45, %s, %d\ns_and_b32 s45, s45, 7' % (idreg, wb))
        if mrot:
            A('s_mul_i32 s47, s45, %d\ns_add_u32 s44, s44, s47' % mrot)
        A('s_and_b32 s44, s44, %d' % ((1 << nrb) - 1))
        A('s_and_b32 s46, %s, %d' % (idreg, waves - 1))
        if amap == 'A':
            A('s_lshl_b32 s44, s44, %d\ns_lshl_b32 s45, s45, %d\ns_lshl_b32 s46, s46, %d' % (unit_bits + wb + 3, unit_bits + wb, unit_bits))
        elif amap == 'B':
            A('s_lshl_b32 s45, s45, %d\ns_lshl_b32 s44, s44, %d\ns_lshl_b32 s46, s46, %d' % (20, unit_bits + wb, unit_bits))
        elif amap == 'C':
            A('s_lshl_b32 s44, s44, %d\ns_lshl_b32 s46, s46, %d\ns_lshl_b32 s45, s45, %d' % (unit_bits + wb + 3, unit_bits + 3, unit_bits))
        A('s_or_b32 %s, s44, s45\ns_or_b32 %s, %s, s46' % (dst, dst, dst))
    def mkdesc(R):
        i = 's%d' % (R + 10)
        if phase == 'kv':
            for k in range(4): A('s_mov_b32 s%d, s%d' % (R + k, 8 + k))
            for k in range(4): A('s_mov_b32 s%d, s%d' % (R + 4 + k, 12 + k))
            mapoff(i, 's%d' % (R + 8), hb, rb, 0)
            mapoff(i, 's%d' % (R + 9), hb, rb, vsh)
        else:
            A('s_cmp_lt_u32 %s, %d' % (i, items // 2))
            for k in range(2):
                A('s_cselect_b32 s%d, s%d, s%d' % (R + k, 8 + k, 12 + k))
                A('s_cselect_b32 s%d, s%d, s%d' % (R + 4 + k, 8 + k, 12 + k))
            for k in (2, 3):
                A('s_mov_b32 s%d, s%d\ns_mov_b32 s%d, s%d' % (R + k, 8 + k, R + 4 + k, 8 + k))
            mapoff(i, 's%d' % (R + 8), hb + 1, rb - 1, 0)
            A('s_add_u32 s%d, s%d, %d' % (R + 9, R + 8, HB))
        A('s_cmp_ge_u32 %s, %d\ns_cselect_b32 s%d, 0, s%d\ns_cselect_b32 s%d, 0, s%d' % (i, items, R + 2, R + 2, R + 6, R + 6))
    def load(gidx, R):
        t = gidx // NG; g = gidx % NG
        for h in range(2):
            f = g * 2048 + h * 256
            r = D0 + gidx * 8 + h * 4
            A('buffer_load_dwordx4 v[%d:%d], v%d, s[%d:%d], s%d offen offset:%d %s' % (r, r + 3, 8 + f // 4096, R + 4 * t, R + 4 * t + 3, R + 8 + t, f % 4096, pol))
    A('s_mov_b32 s%d, s34' % (CUR + 10)); mkdesc(CUR)
    A('s_add_u32 s%d, s34, %d' % (NXT + 10, gw)); mkdesc(NXT)
    A('s_mov_b32 s35, 2')
    A('s_mov_b32 s36, 0')
    for g in range(D):
        load(g, CUR)
    A('L_loop:')
    A('s_cmp_lt_u32 s35, %d\ns_cbranch_scc1 L_body_static' % srounds)
    for dyn in (1, 0):
        if not dyn: A('L_body_static:')
        if dyn:
            A('s_mov_b64 exec, 1')
            A('global_atomic_add v12, v10, v11, s[20:21] sc0 sc1')
            A('s_mov_b64 exec, -1')
        for g in range(G):
            extra = 1 if (dyn and g < D) else 0
            A('s_waitcnt vmcnt(%d)' % (2 * (D - 1) + extra))
            A('v_xor_b32 v5, v5, v%d' % (D0 + g * 8))
            A('v_xor_b32 v5, v5, v%d' % (D0 + g * 8 + 4))
            j = g + D
            if j < G: load(j, CUR)
            else: load(j - G, NXT)
        A('s_add_u32 s36, s36, 1')
        for k in (0,1,2,4,5,6,8,9,10): A('s_mov_b32 s%d, s%d' % (CUR + k, NXT + k))
        if dyn:
            if D == G: A('s_waitcnt vmcnt(%d)' % (2 * D))
            A('v_readfirstlane_b32 s%d, v12' % (NXT + 10))
            A('s_add_u32 s%d, s%d, %d' % (NXT + 10, NXT + 10, srounds * gw))
        else:
            A('s_add_u32 s%d, s%d, %d' % (NXT + 10, NXT + 10, gw))
            A('s_add_u32 s35, s35, 1')
        mkdesc(NXT)
        A('s_cmp_lt_u32 s%d, %d\ns_cbranch_scc1 L_loop' % (CUR + 10, items))
        if dyn: A('s_branch L_done')
    A('L_done:')
    A('s_waitcnt vmcnt(0)')
    A('s_memrealtime s[28:29]')
    A('s_getreg_b32 s41, hwreg(HW_REG_HW_ID)')
    A('s_waitcnt lgkmcnt(0)')
    A('s_lshl_b32 s36, s36, 8\ns_and_b32 s40, s40, 15\ns_or_b32 s40, s40, s36')
    A('v_mov_b32 v12, s24\nv_mov_b32 v13, s28\nv_mov_b32 v14, s40\nv_mov_b32 v15, s41')
    A('s_mul_i32 s20, s30, %d\ns_add_u32 s20, s20, s3\ns_lshl_b32 s20, s20, 4' % waves)
    A('v_mov_b32 v6, s20')
    A('v_cmp_eq_u32 vcc, 0, v2\ns_and_saveexec_b64 s[42:43], vcc')
    A('global_store_dwordx4 v6, v[12:15], s[22:23]')
    A('L_end:\ns_endpgm')
    nv = D0 + 8 * G
    A('.section .rodata,"a"\n.p2align 6\n.amdhsa_kernel %s_kernel' % KN)
    A('  .amdhsa_next_free_vgpr %d\n  .amdhsa_next_free_sgpr 80\n  .amdhsa_accum_offset %d' % (nv, min(256, (nv + 3) // 4 * 4)))
    A('  .amdhsa_group_segment_fixed_size 0\n  .amdhsa_kernarg_size 96\n  .amdhsa_user_sgpr_count 2\n  .amdhsa_user_sgpr_kernarg_segment_ptr 1\n  .amdhsa_system_sgpr_workgroup_id_x 1\n.end_amdhsa_kernel')
    return '\n'.join(o) + '\n'
if __name__ == '__main__':
    names = []
    cfgs = eval(sys.argv[1])
    for c in cfgs:
        n = 'dz_' + '_'.join('%s%s' % (k, str(v).replace(' ','')) for k, v in c.items()) + '.s'
        open(n, 'w').write(gen(**c))
        names.append(n)
    print(' '.join(names))
```

```python
import sys
KN = 'sequential_preLN__mha_block_cached__geglu_ffn__decode'
def gen(lr=(9, 10), g=(11, 12), w=(14, 15, 16), r=(17, 18, 19, 20), m=(21, 22), swz=1, rot=0, aware=1, D=2, static=0.8, pol='nt', tag='', wrot=0, fused=0):
    lead = lambda p: p[0] if isinstance(p, tuple) else p
    if w is None:
        rest = [b for b in range(9, 21) if b != 13 and b not in [lead(p) for p in list(lr) + list(g)]]
        w, r = rest[:3], rest[3:]
    allb = sorted([lead(p) for p in list(lr) + list(g)] + list(w) + list(r) + list(m) + [13])
    assert allb == list(range(9, 23)), allb
    assert 21 not in lr and 21 not in g
    items = 1024
    gw = 32
    srounds = max(int(round(32 * static)), 2)
    o = []
    A = o.append
    A('; @launch grid=(256,1,1) block=(512,1,1) lds=0')
    A('.amdgcn_target "amdgcn-amd-amdhsa--gfx950"')
    A('.text\n.globl %s_kernel\n.p2align 8\n.type %s_kernel,@function\n%s_kernel:' % (KN, KN, KN))
    A('s_cmp_ge_u32 s2, 256\ns_cbranch_scc1 L_end')
    A('s_memrealtime s[24:25]')
    A('s_load_dwordx4 s[4:7], s[0:1], 8')
    A('s_load_dwordx4 s[20:23], s[0:1], 80')
    A('s_getreg_b32 s40, hwreg(HW_REG_XCC_ID)')
    A('s_and_b32 s40, s40, 7')
    A('v_lshrrev_b32 v1, 6, v0\nv_and_b32 v2, 63, v0\ns_nop 0\nv_readfirstlane_b32 s3, v1')
    A('s_waitcnt lgkmcnt(0)')
    A('s_mov_b32 s30, s2')
    A('s_lshr_b32 s31, s2, 3\ns_and_b32 s33, s40, 3\ns_lshr_b32 s38, s40, 2')
    A('s_lshl_b32 s16, s31, 23')
    A('s_add_u32 s8, s4, s16\ns_addc_u32 s9, s5, 0\ns_and_b32 s9, s9, 0xffff\ns_mov_b32 s10, 0x800000\ns_mov_b32 s11, 0x20000')
    A('s_add_u32 s12, s6, s16\ns_addc_u32 s13, s7, 0\ns_and_b32 s13, s13, 0xffff\ns_mov_b32 s14, 0x800000\ns_mov_b32 s15, 0x20000')
    A('s_mul_i32 s34, s33, 8\ns_add_u32 s34, s34, s3')
    def pat(p):
        if isinstance(p, tuple): return sum(1 << b for b in p)
        return (1 << p) | ((1 << (p - 8)) if (swz and p >= 17 and p != 21) else 0)
    A('v_and_b32 v4, 15, v2\nv_lshlrev_b32 v8, 4, v4')
    for k in range(2):
        A('v_bfe_u32 v3, v2, %d, 1\nv_mul_u32_u24 v3, 0x%x, v3\nv_xor_b32 v8, v8, v3' % (4 + k, pat(lr[k])))
    if fused:
        A('v_xor_b32 v9, 0x%x, v8\nv_mov_b32 v10, v8\nv_mov_b32 v11, v9' % pat(g[0]))
        r = [g[1]] + list(r)
    else:
        A('v_xor_b32 v9, 0x%x, v8\nv_xor_b32 v10, 0x%x, v8\nv_xor_b32 v11, 0x%x, v8' % (pat(g[0]), pat(g[1]), pat(g[0]) ^ pat(g[1])))
    A('v_mov_b32 v5, 0')
    A('s_lshl_b32 s17, s31, 1\ns_add_u32 s17, s17, s38\ns_mul_i32 s17, s17, 256\nv_mov_b32 v60, s17\nv_mov_b32 v61, 1')
    A('s_load_dwordx2 s[26:27], s[20:21], 0x7000\ns_waitcnt lgkmcnt(0)')
    A('s_xor_b32 s26, s38, s26\ns_xor_b32 s27, s38, s27')
    A('s_mul_i32 s37, s31, %d' % rot)
    D0 = 16
    CUR, NXT = 48, 64
    def mkdesc(R):
        i = 's%d' % (R + 10)
        A('s_cmp_lt_u32 %s, %d' % (i, 0x7fff if fused else items // 2))
        for k in range(2): A('s_cselect_b32 s%d, s%d, s%d' % (R + k, 8 + k, 12 + k))
        A('s_cselect_b32 s39, s26, s27')
        for k in (2, 3): A('s_mov_b32 s%d, s%d' % (R + k, 8 + k))
        A('s_lshr_b32 s44, %s, 5' % i)
        if rot:
            A('s_bfe_u32 s45, %s, 0x20003\ns_mul_i32 s45, s45, %d\ns_add_u32 s44, s44, s45\ns_add_u32 s44, s44, s37' % (i, 5))
        if wrot:
            A('s_and_b32 s45, %s, 7\ns_mul_i32 s45, s45, %d\ns_add_u32 s44, s44, s45' % (i, wrot))
        A('s_mov_b32 s46, 0')
        for k, p in enumerate(r): A('s_bfe_u32 s45, s44, 0x%x\ns_lshl_b32 s45, s45, %d\ns_or_b32 s46, s46, s45' % (0x10000 | k, p))
        for k, p in enumerate(w): A('s_bfe_u32 s45, %s, 0x%x\ns_lshl_b32 s45, s45, %d\ns_or_b32 s46, s46, s45' % (i, 0x10000 | k, p))
        for k, p in enumerate(m): A('s_bfe_u32 s45, %s, 0x%x\ns_lshl_b32 s45, s45, %d\ns_or_b32 s46, s46, s45' % (i, 0x10000 | (3 + k), p))
        if aware:
            A('s_add_u32 s45, s46, s%d\ns_lshr_b32 s45, s45, 21\ns_xor_b32 s45, s45, s39\ns_and_b32 s45, s45, 1\ns_lshl_b32 s45, s45, 13' % R)
        else:
            A('s_xor_b32 s45, %s, s38\ns_and_b32 s45, s45, 1\ns_lshl_b32 s45, s45, 13' % i)
        A('s_or_b32 s%d, s46, s45' % (R + 8))
        if fused:
            if aware: A('s_add_u32 s45, s46, s12\ns_lshr_b32 s45, s45, 21\ns_xor_b32 s45, s45, s27\ns_and_b32 s45, s45, 1\ns_lshl_b32 s45, s45, 13')
            A('s_or_b32 s%d, s46, s45' % (R + 9))
            A('s_mov_b32 s%d, s12\ns_mov_b32 s%d, s13\ns_mov_b32 s%d, s15' % (R + 4, R + 5, R + 7))
            A('s_cmp_ge_u32 %s, %d\ns_cselect_b32 s%d, 0, s14' % (i, items, R + 6))
        A('s_cmp_ge_u32 %s, %d\ns_cselect_b32 s%d, 0, s%d' % (i, items, R + 2, R + 2))
    def load(gi, R):
        t = 1 if (fused and gi >= 2) else 0
        A('v_xor_b32 v12, s%d, v%d' % (R + 8 + t, 8 + gi))
        for h in range(2):
            rr = D0 + gi * 8 + h * 4
            A('buffer_load_dwordx4 v[%d:%d], v12, s[%d:%d], 0 offen offset:%d %s' % (rr, rr + 3, R + 4 * t, R + 4 * t + 3, h * 256, pol))
    A('s_mov_b32 s%d, s34' % (CUR + 10)); mkdesc(CUR)
    A('s_add_u32 s%d, s34, %d' % (NXT + 10, gw)); mkdesc(NXT)
    A('s_mov_b32 s35, 2')
    A('s_mov_b32 s36, 0')
    A('v_mov_b32 v7, 0\ns_mov_b32 m0, 63\ns_mov_b32 s76, s24')
    for gi in range(D): load(gi, CUR)
    A('L_loop:')
    A('s_cmp_lt_u32 s35, %d\ns_cbranch_scc1 L_body_static' % srounds)
    for dyn in (1, 0):
        if not dyn: A('L_body_static:')
        if dyn:
            A('s_mov_b64 exec, 1')
            A('global_atomic_add v62, v60, v61, s[20:21] sc0 sc1')
            A('s_mov_b64 exec, -1')
        for gi in range(4):
            extra = 1 if (dyn and gi < D) else 0
            A('s_waitcnt vmcnt(%d)' % (2 * (D - 1) + extra))
            A('v_xor_b32 v5, v5, v%d' % (D0 + gi * 8))
            A('v_xor_b32 v5, v5, v%d' % (D0 + gi * 8 + 4))
            j = gi + D
            if j < 4: load(j, CUR)
            else: load(j - 4, NXT)
        A('s_waitcnt lgkmcnt(0)\nv_writelane_b32 v7, s76, m0\ns_min_u32 m0, s36, 62\ns_memrealtime s[76:77]')
        A('s_add_u32 s36, s36, 1')
        for k in ((0, 1, 2, 6, 8, 9, 10) if fused else (0, 1, 2, 8, 10)): A('s_mov_b32 s%d, s%d' % (CUR + k, NXT + k))
        if dyn:
            A('v_readfirstlane_b32 s%d, v62' % (NXT + 10))
            A('s_add_u32 s%d, s%d, %d' % (NXT + 10, NXT + 10, srounds * gw))
        else:
            A('s_add_u32 s%d, s%d, %d' % (NXT + 10, NXT + 10, gw))
            A('s_add_u32 s35, s35, 1')
        mkdesc(NXT)
        A('s_cmp_lt_u32 s%d, %d\ns_cbranch_scc1 L_loop' % (CUR + 10, items))
        if dyn: A('s_branch L_done')
    A('L_done:')
    A('s_waitcnt vmcnt(0)')
    A('s_memrealtime s[28:29]')
    A('s_waitcnt lgkmcnt(0)')
    A('v_mov_b32 v12, s24\nv_mov_b32 v13, s28\nv_mov_b32 v14, s40\nv_mov_b32 v15, v5')
    A('s_mul_i32 s20, s30, 8\ns_add_u32 s20, s20, s3\ns_lshl_b32 s20, s20, 4')
    A('v_mov_b32 v6, s20')
    A('v_writelane_b32 v7, s76, m0\ns_lshl_b32 s21, s20, 4\ns_add_u32 s21, s21, 0x200000\nv_lshlrev_b32 v3, 2, v2\nv_add_u32 v3, s21, v3\nglobal_store_dword v3, v7, s[22:23]')
    A('v_cmp_eq_u32 vcc, 0, v2\ns_and_saveexec_b64 s[42:43], vcc')
    A('global_store_dwordx4 v6, v[12:15], s[22:23]')
    A('L_end:\ns_endpgm')
    A('.section .rodata,"a"\n.p2align 6\n.amdhsa_kernel %s_kernel' % KN)
    A('  .amdhsa_next_free_vgpr 64\n  .amdhsa_next_free_sgpr 80\n  .amdhsa_accum_offset 64')
    A('  .amdhsa_group_segment_fixed_size 0\n  .amdhsa_kernarg_size 96\n  .amdhsa_user_sgpr_count 2\n  .amdhsa_user_sgpr_kernarg_segment_ptr 1\n  .amdhsa_system_sgpr_workgroup_id_x 1\n.end_amdhsa_kernel')
    return '\n'.join(o) + '\n'
if __name__ == '__main__':
    names = []
    for n, c in eval(sys.argv[1]).items():
        n = 'dr9_' + n + '.s'
        open(n, 'w').write(gen(**c))
        names.append(n)
    print(' '.join(names))
```
